```python
import torch

def _softmax(x, axis=-1):
    return torch.softmax(x, dim=axis)
def _gelu(x):
    return torch.nn.functional.gelu(x, approximate="tanh")
def _silu(x):
    return torch.nn.functional.silu(x)
def _sigmoid(x):
    return torch.sigmoid(x)
def _layernorm(x, axis=-1, eps=1e-5):
    m = x.mean(dim=axis, keepdim=True)
    v = x.var(dim=axis, keepdim=True, unbiased=False)
    return (x - m) / torch.sqrt(v + eps)
def _scatter_add(tgt, idx, src, axis=0):
    return tgt.clone().index_add_(axis, idx, src)
def _segment_sum(src, seg, n):
    out = torch.zeros((n,) + src.shape[1:], dtype=src.dtype)
    return out.index_add_(0, seg, src)
def _pad(x, pw):
    flat = tuple(v for pair in reversed(pw) for v in pair)
    return torch.nn.functional.pad(x, flat)

kernel_name = 'gather_scatter__cheap_equivariant_egnn__graph'

def setup_inputs():

    _w = (lambda a: (lambda t: t.to(torch.bfloat16) if t.is_floating_point() else t)(torch.as_tensor(a)))
    N, deg, D, De = 10000, 64, 64, max(4, 1)
    E = N * deg
    return {
        "h": _w((lambda *s: torch.randn(*s, dtype=torch.bfloat16) * 0.2)(N, D)),
        "pos": _w((lambda *s: torch.randn(*s, dtype=torch.bfloat16) * 0.8)(N, 3)),
        "e_attr": _w((lambda *s: torch.randn(*s, dtype=torch.bfloat16) * 0.8)(E, De)),
        "src": _w((lambda lo, hi, *s: torch.randint(lo, hi, s))(0, N, E).to(torch.int64)),
        "dst": _w((lambda lo, hi, *s: torch.randint(lo, hi, s))(0, N, E).to(torch.int64)),
        "w_e": _w(0.1 * (lambda *s: torch.randn(*s, dtype=torch.bfloat16) * 0.8)(2 * D + 1 + De, D)),
        "w_x": _w(0.1 * (lambda *s: torch.randn(*s, dtype=torch.bfloat16) * 0.2)(D, 1)),
        "w_h": _w(0.1 * (lambda *s: torch.randn(*s, dtype=torch.bfloat16) * 0.2)(2 * D, D)),
    }

def reference(h, pos, e_attr, src, dst, w_e, w_x, w_h):
    N, D = h.shape[0], h.shape[1]
    diff = pos[dst] - pos[src]
    dist2 = torch.sum(diff * diff, axis=-1, keepdims=True)
    e_in = torch.concatenate([h[dst], h[src], dist2, e_attr], axis=-1)
    m_ij = _silu(e_in @ w_e)
    coord_scale = m_ij @ w_x
    pos_new = pos + _segment_sum(diff * coord_scale, dst, N)
    m_i = _segment_sum(m_ij, dst, N)
    h_new = h + _silu(torch.concatenate([h, m_i], axis=-1) @ w_h)
    return h_new, pos_new
```

```python
import sys, struct, math

class Opt:
    warm_h = 1
    warm_a = 1
    warm_c = 1
    warm_late = 0
    stamps = 0
    pp = 1
    sleep = 1
    cap = 3072
    lim = 3000
    x = ''

def f32(x):
    return struct.unpack('<I', struct.pack('<f', x))[0]

N = 10000; E = 640000
LOG2E = math.log2(math.e); LN2 = math.log(2.0)
CSTR = 40960
WS_EPOCH = 256 * CSTR
WS_END = WS_EPOCH + 64
WS_STAMP = 11 << 20
MAGIC625 = 6871948
KN = 'gather_scatter__cheap_equivariant_egnn__graph_kernel'

class Asm:
    def __init__(self):
        self.l = []
    def __call__(self, s):
        if isinstance(s, (list, tuple)):
            for x in s:
                self(x)
            return
        for line in s.split('\n'):
            line = line.strip()
            if line:
                self.l.append(('' if line.endswith(':') else '  ') + line)
    def text(self):
        return '\n'.join(self.l) + '\n'

def srd(a, d, base, nbytes, stride=0):
    if stride:
        a(f's_mov_b32 s{d}, s{base}\ns_or_b32 s{d+1}, s{base+1}, 0x{stride << 16:x}\ns_mov_b32 s{d+2}, {nbytes}\ns_mov_b32 s{d+3}, 0x20000')
    else:
        a(f's_mov_b32 s{d}, s{base}\ns_mov_b32 s{d+1}, s{base+1}\ns_mov_b32 s{d+2}, {nbytes}\ns_mov_b32 s{d+3}, 0x20000')
def vr(b, n):
    return f'v[{b}:{b+n-1}]' if n > 1 else f'v{b}'
def sr(b, n=4):
    return f's[{b}:{b+n-1}]'
def scan64(a, v):
    for m in ('row_shr:1', 'row_shr:2', 'row_shr:4', 'row_shr:8'):
        a(f's_nop 1\nv_add_u32_dpp v{v}, v{v}, v{v} {m} row_mask:0xf bank_mask:0xf')
    a(f's_nop 1\nv_add_u32_dpp v{v}, v{v}, v{v} row_bcast:15 row_mask:0xa bank_mask:0xf')
    a(f's_nop 1\nv_add_u32_dpp v{v}, v{v}, v{v} row_bcast:31 row_mask:0xc bank_mask:0xf')
def mfma(d, aop, bop, c):
    cc = '0' if c is None else vr(c, 16)
    return f'v_mfma_f32_32x32x16_bf16 {vr(d,16)}, {vr(aop,4)}, {vr(bop,4)}, {cc}'
def mfma16(d, aop, bop, c):
    cc = '0' if c is None else vr(c, 4)
    return f'v_mfma_f32_16x16x32_bf16 {vr(d,4)}, {vr(aop,4)}, {vr(bop,4)}, {cc}'

class LQ:
    def __init__(s, a):
        s.a = a; s.q = []
    def op(s, txt, sure=True):
        s.a(txt); s.q.append(sure); return len(s.q) - 1
    def wait(s, i):
        n = sum(1 for x in s.q[i+1:] if x)
        s.a(f's_waitcnt lgkmcnt({min(n, 15)})')

CAPMAX = 3072
L_CNT = 0; L_PD = 256; L_WXF = L_PD + 768; L_IDT = 1280; L_RAWM = 1344; L_MASKG = 1376
L_AG = 1408
L_XW = L_AG + 5120
L_ENT = (L_XW + 640 + 255) // 256 * 256
L_STG = L_ENT + CAPMAX * 16
L_HR = L_STG + 24576
L_WH2 = L_STG + 32768
L_POS = L_WH2 + 8192
SLOT = 2432; NSTR = 272
L_SLOT = L_POS
L_ATT = L_POS + 12 * SLOT
L_END = L_POS + 60416
L_IMG = L_ENT; ISTR = 132
L_MAST = L_ENT + 32768
assert L_END <= 163840 and L_ATT + CAPMAX * 8 + 1024 <= L_END and L_MAST + 12288 + 512 <= L_STG
assert L_STG % 256 == 0 and 256 * ISTR <= CAPMAX * 16

V_LANE = 1
W2 = 4; XB = 36; UH = 44; HRES = 52; AADDR = 56; PWD = 60; PWS = 61; PWR = 62; PX = 63
ACC = 64; Y = 96; T = 128; AR = 160; X = 176; S = 180; WD = 188; WS_ = 192; WR = 196; VBS = 197
XI = 198; DP = 200; OHB = 208; VSL = 209; VSP = 210; TMPA = 211; ONES = 212; TMPB = 214; VRO = 215
WXT = 216; L4 = 248; VCB = 249; PXA = 250; PXI = 251; VWARM = 252; VJ12 = 253; TRB = 255
EN = 64; KEY = 124; RANK = 139; VH = 154; VHJ = 155; R = 156; TT = 176; KXT = 194
S_WAVE = 3; S_BETA = 26; S_N0 = 27
S_H = 28; S_ATT = 32; S_WS = 36; S_POS = 40; S_TAG = 44; S_KX = 45; S_EXT = 46; S_IT = 47; S_OUT = 48
S_NN = 52; S_SLOW = 53; S_RND = 54; S_BUMP = 55; S_T1 = 56; S_T2 = 57; S_T3 = 58; S_FC = 59
S_UP = 60; EXEC_UP = 's[60:61]'; S_C66 = 62; S_ORD = 63
S_MASK = 64
S_SRC = 64; S_DST = 68; S_WE = 72; S_WH = 76; S_MI = 80; S_HP = 84; S_CODE = 92
S_TB = 64; S_T = 70; S_END = 71; S_G = 72; S_GP = 73; S_GN = 74; S_NB = 75; S_STG = 76; S_DLT = 77
S_M0A = 78
S_SRCM = 94; S_SMSK = 95
S_PB = 96; S_RW = 97; S_RB = 98; S_RJ = 99; S_EOFF = 100

def gen(o):
    a = Asm()
    XP = set(o.x.split(','))
    CAP = o.cap
    def stamp(idx):
        if o.stamps:
            a(f'''s_memrealtime s[24:25]
            s_waitcnt lgkmcnt(0)
            v_writelane_b32 v254, s24, {idx}''')
    SC = ' sc1'
    DSTV = 64; SRCV = 72; BIN = 80; RK = 88; REC1 = 96; EB = 104
    W2RAW = 112; PDV = 140; F = 141; HH = 142; TRA = 143; SCT = 144; RO = 176
    a(f'''s_cmp_ge_u32 s2, 256
    s_cbranch_scc1 L_done''')
    if o.stamps:
        a('s_memrealtime s[96:97]')
    a(f'''s_load_dwordx16 s[4:19], s[0:1], 0
    s_load_dwordx4 s[20:23], s[0:1], 64
    s_load_dwordx2 s[24:25], s[0:1], 80
    v_and_b32 v{V_LANE}, 63, v0
    v_lshrrev_b32 v3, 6, v0
    v_lshlrev_b32 v2, 4, v0
    v_readfirstlane_b32 s{S_WAVE}, v3
    v_lshlrev_b32 v3, 2, v0
    v_lshlrev_b32 v{L4}, 2, v{V_LANE}
    v_mov_b32 v8, 4
    s_movk_i32 s{S_T1}, 452
    v_cmp_gt_u32 s[88:89], s{S_T1}, v0
    s_mul_i32 s{S_T2}, s2, 10000
    s_add_u32 s{S_T3}, s{S_T2}, 8192
    s_mov_b32 s{S_EOFF}, {WS_EPOCH}
    s_mov_b32 s{S_DST+2}, {E*4}
    s_mov_b32 s{S_DST+3}, 0x20000
    s_mov_b32 s{S_SRC+2}, {E*4}
    s_mov_b32 s{S_SRC+3}, 0x20000
    s_cmp_ge_u32 s{S_WAVE}, 4
    s_cbranch_scc1 L_nohdr
    v_mul_u32_u24 v9, {ISTR}, v0
    ds_write_b32 v9, v8 offset:{L_IMG}
    L_nohdr:
    s_cmp_lg_u32 s{S_WAVE}, 4
    s_cbranch_scc1 L_noinit
    v_mov_b32 v11, 0
    v_and_b32 v9, 1, v{V_LANE}
    ds_write_b32 v{L4}, v11 offset:{L_CNT}
    v_lshlrev_b32 v9, 4, v9
    v_mov_b32 v10, 0x3f80
    v_lshlrev_b32 v10, v9, v10
    s_mov_b64 exec, 0xc03
    v_mov_b32 v11, v10
    s_mov_b32 exec_lo, -1
    ds_write_b32 v{L4}, v11 offset:{L_IDT}
    s_mov_b64 exec, -1
    L_noinit:
    s_waitcnt lgkmcnt(0)
    s_mov_b32 s{S_DST}, s12
    s_mov_b32 s{S_DST+1}, s13
    s_mov_b32 s{S_SRC}, s10
    s_mov_b32 s{S_SRC+1}, s11
    buffer_load_dwordx4 {vr(DSTV,4)}, v2, {sr(S_DST)}, s{S_T2} offen
    s_mov_b64 exec, s[88:89]
    buffer_load_dword v{DSTV+4}, v3, {sr(S_DST)}, s{S_T3} offen
    s_mov_b64 exec, -1
    buffer_load_dwordx4 {vr(SRCV,4)}, v2, {sr(S_SRC)}, s{S_T2} offen
    s_mov_b64 exec, s[88:89]
    buffer_load_dword v{SRCV+4}, v3, {sr(S_SRC)}, s{S_T3} offen
    s_mov_b64 exec, -1
    s_load_dword s{S_TAG}, s[24:25], s{S_EOFF}''')
    srd(a, S_WS, 24, WS_STAMP + (1 << 20) if o.stamps else WS_END)
    if o.stamps:
        a('v_writelane_b32 v254, s96, 0')
    stamp(1)
    a(f'''s_and_b32 s{S_BETA}, s2, 7
    s_lshl_b32 s{S_BETA}, s{S_BETA}, 5
    s_lshr_b32 s{S_T1}, s2, 3
    s_add_u32 s{S_BETA}, s{S_BETA}, s{S_T1}
    s_mul_i32 s{S_N0}, s{S_BETA}, 625
    s_add_u32 s{S_NN}, s{S_N0}, 625
    s_lshr_b32 s{S_N0}, s{S_N0}, 4
    s_lshr_b32 s{S_NN}, s{S_NN}, 4
    s_sub_u32 s{S_NN}, s{S_NN}, s{S_N0}''')
    srd(a, S_WE, 14, 133 * 128)
    srd(a, S_WH, 18, 128 * 128)
    srd(a, S_HP, 4, N * 128)
    srd(a, S_POS, 6, N * 6)
    a('s_barrier')
    def code_warm():
        a(f'''s_cmp_lg_u32 s{S_WAVE}, 7
        s_cbranch_scc1 L_nocw
        s_getpc_b64 s[{S_CODE}:{S_CODE+1}]
        L_pc:
        s_mov_b32 s{S_CODE+2}, L_code_end-L_pc
        s_mov_b32 s{S_CODE+3}, 0x20000
        s_bfe_u32 s{S_T1}, s2, 0x10003
        s_lshl_b32 s{S_T1}, s{S_T1}, 13
        v_lshlrev_b32 v9, 7, v{V_LANE}
        buffer_load_dword v{VWARM}, v9, {sr(S_CODE)}, s{S_T1} offen
        L_nocw:''')
    if o.warm_c:
        code_warm()
    nU = 0
    a(f'''s_movk_i32 s{S_T1}, 8192
    buffer_load_dwordx4 {vr(W2RAW,4)}, v2, {sr(S_WE)}, s{S_T1} offen
    s_lshl_b32 s{S_T2}, s{S_WAVE}, 10
    s_add_u32 m0, s{S_T2}, {L_STG + 8192}
    v_and_b32 v{F}, 31, v{V_LANE}
    buffer_load_dwordx4 v2, {sr(S_WE)}, 0 offen lds
    s_add_u32 m0, s{S_T2}, {L_STG + 16384}
    v_lshrrev_b32 v{HH}, 5, v{V_LANE}
    buffer_load_dwordx4 v2, {sr(S_WH)}, 0 offen lds
    s_add_u32 m0, s{S_T2}, {L_WH2}
    v_mul_u32_u24 v9, 6, v{V_LANE}
    buffer_load_dwordx4 v2, {sr(S_WH)}, s{S_T1} offen lds
    s_add_u32 m0, s{S_T2}, {L_HR}
    s_lshl_b32 s{S_T1}, s{S_N0}, 7
    buffer_load_dwordx4 v2, {sr(S_HP)}, s{S_T1} offen lds
    v_lshlrev_b32 v12, 4, v{V_LANE}
    s_movk_i32 s{S_T3}, 16384
    s_movk_i32 m0, {L_XW}
    s_mov_b32 exec_hi, 0xff
    buffer_load_dwordx4 v12, {sr(S_WE)}, s{S_T3} offen lds
    s_mov_b32 exec_hi, -1''')
    nU += 6
    a(f'''v_cmp_gt_u32 vcc, s{S_NN}, v{V_LANE}
    v_mov_b32 v10, 0x7fffff00
    s_mul_i32 s{S_T1}, s{S_N0}, 6
    v_cndmask_b32 v9, v10, v9, vcc
    s_lshl_b32 s{S_T3}, s{S_WAVE}, 1
    s_add_u32 s{S_T1}, s{S_T1}, s{S_T3}
    v_lshlrev_b32 v10, 1, v{V_LANE}
    s_cmp_eq_u32 s{S_WAVE}, 3
    s_cselect_b32 s{S_MI}, s16, s6
    s_cselect_b32 s{S_MI+1}, s17, s7
    s_cselect_b32 s{S_MI+2}, 128, s{S_POS+2}
    s_cselect_b32 s{S_T1}, 0, s{S_T1}
    s_cselect_b64 vcc, -1, 0
    s_mov_b32 s{S_MI+3}, 0x20000
    v_cndmask_b32 v9, v9, v10, vcc
    buffer_load_ushort v{PDV}, v9, {sr(S_MI)}, s{S_T1} offen''')
    nU += 1
    def pos_dma(vaddr):
        for j in range(8):
            a(f's_add_u32 s{S_T1}, s{S_T2}, {j*8192}')
            if j == 7:
                a(f's_min_u32 s{S_T1}, s{S_T1}, {58*1024}')
            a(f's_add_u32 m0, s{S_T1}, {L_POS}\ns_nop 0')
            a(f'buffer_load_dwordx4 v{vaddr}, {sr(S_POS)}, s{S_T1} offen lds')
    pos_dma(12)
    nU += 8
    srd(a, S_ATT, 8, E, stride=8)
    nW = 0
    def warms():
        n = 0
        if o.warm_h:
            a(f'''s_lshr_b32 s{S_T1}, s2, 3
            s_mul_i32 s{S_T1}, s{S_T1}, 40000
            v_mul_u32_u24 v9, 80, v0
            buffer_load_dword v{VWARM}, v9, {sr(S_HP)}, s{S_T1} offen''')
            n += 1
        if o.warm_a:
            a(f'''s_mul_i32 s{S_T1}, s2, 2500
            v_mul_u32_u24 v9, 5, v0
            v_add_u32 v9, s{S_T1}, v9
            buffer_load_dword v{VWARM}, v9, {sr(S_ATT)}, 0 idxen''')
            n += 1
        return n
    if not o.warm_late:
        nW = warms()
    srd(a, S_OUT, 20, 670000 * 2)
    srd(a, S_H, 4, N, stride=128)
    a(f'''s_mov_b32 s{S_SLOW}, 0
    s_mov_b32 s{S_BUMP}, 0
    s_mov_b32 s{S_RND}, 8
    s_mov_b32 s{S_UP}, 0
    s_mov_b32 s{S_UP+1}, -1
    s_movk_i32 s{S_FC}, 0xfc
    s_movk_i32 s{S_SRCM}, 0x3fff
    s_mov_b32 s{S_SMSK}, 0xfc000000
    s_mov_b32 s{S_C66}, 0xbf800000
    s_mov_b32 s{S_PB}, {L_POS}
    s_and_b32 s{S_ORD}, s{S_WAVE}, 3
    s_lshl_b32 s{S_ORD}, s{S_ORD}, 1
    s_lshr_b32 s{S_T1}, s{S_WAVE}, 2
    s_add_u32 s{S_ORD}, s{S_ORD}, s{S_T1}
    v_lshlrev_b32 v{EB}, 16, v0''')
    for j in range(1, 4):
        a(f'v_add_u32 v{EB+j}, {j << 14}, v{EB}')
    a(f'''v_add_u32 v{EB+4}, 2048, v0
    v_lshlrev_b32 v{EB+4}, 14, v{EB+4}
    v_mov_b32 v{ONES}, 0x3f80
    v_mov_b32 v{ONES+1}, 0
    v_mov_b32 v{PXI}, 0x100
    s_mov_b64 exec, {EXEC_UP}
    v_mov_b32 v{ONES}, 0
    v_mov_b32 v{PXI}, 0x200
    s_mov_b64 exec, -1
    v_lshlrev_b32 v{OHB}, 4, v{HH}
    v_or_b32 v{OHB}, {L_IDT}, v{OHB}
    v_lshrrev_b32 v9, 2, v{F}
    v_mul_u32_u24 v{VSL}, {NSTR}, v9
    v_lshl_add_u32 v{VSL}, v{HH}, 4, v{VSL}
    v_add_u32 v{VSL}, {L_SLOT}, v{VSL}
    v_lshlrev_b32 v{VSP}, 3, v{F}
    v_lshl_add_u32 v{VSP}, v{HH}, 2, v{VSP}
    v_add_u32 v{VSP}, {L_SLOT + 8*NSTR}, v{VSP}
    v_lshrrev_b32 v9, 4, v{V_LANE}
    v_and_b32 v10, 7, v{V_LANE}
    v_xor_b32 v10, v9, v10
    v_lshlrev_b32 v{DP+1}, 4, v10
    v_xor_b32 v{DP+3}, 64, v{DP+1}
    v_mov_b32 v{DP+5}, v{DP+1}
    v_mov_b32 v{DP+7}, v{DP+3}
    s_lshl_b32 s{S_T1}, s{S_WAVE}, 12
    s_add_u32 s{S_T1}, s{S_T1}, {L_STG}
    v_lshrrev_b32 v10, 1, v{F}
    v_and_b32 v10, 7, v10
    v_xor_b32 v10, v10, v{HH}
    v_lshlrev_b32 v10, 4, v10
    v_lshl_add_u32 v10, v{F}, 7, v10
    v_add_u32 v{AADDR}, s{S_T1}, v10''')
    for s in range(1, 4):
        a(f'v_xor_b32 v{AADDR+s}, {32*s}, v{AADDR}')
    a(f'''v_lshrrev_b32 v10, 2, v{V_LANE}
    v_and_b32 v10, 3, v10
    v_and_b32 v11, 3, v{V_LANE}
    v_lshl_add_u32 v13, v{HH}, 3, v10
    v_lshlrev_b32 v13, 7, v13
    v_lshl_add_u32 v13, v11, 3, v13
    v_and_b32 v14, 1, v9
    v_lshl_add_u32 v13, v14, 5, v13
    v_add_u32 v{TRA}, {L_STG}, v13
    v_lshl_add_u32 v13, v9, 3, v10
    v_lshlrev_b32 v13, 7, v13
    v_lshl_add_u32 v13, v11, 4, v13
    s_and_b32 s{S_T1}, s{S_WAVE}, 1
    s_lshl_b32 s{S_T1}, s{S_T1}, 6
    s_add_u32 s{S_T2}, s{S_T1}, {L_STG}
    v_add_u32 v{TRB}, s{S_T2}, v13''')
    a(f'''v_and_b32 v10, 1, v{V_LANE}
    v_lshlrev_b32 v{XI+1}, 2, v10
    v_mul_u32_u24 v{VJ12}, 12, v10
    v_lshrrev_b32 v9, 1, v0
    s_movk_i32 s{S_T2}, 2500
    v_mul_u32_u24 v{VCB}, s{S_T2}, v9
    s_mov_b32 s{S_T2}, {CSTR}
    v_mul_u32_u24 v{VRO}, s{S_T2}, v9
    v_lshl_add_u32 v{VRO}, v10, 4, v{VRO}
    s_lshr_b32 s{S_T1}, s{S_BETA}, 5
    s_mul_i32 s{S_T1}, s{S_T1}, 5120
    s_and_b32 s{S_T3}, s{S_BETA}, 31
    s_lshl_b32 s{S_T3}, s{S_T3}, 5
    s_add_u32 s{S_T1}, s{S_T1}, s{S_T3}
    v_add_u32 v{VRO}, s{S_T1}, v{VRO}
    v_mul_u32_u24 v14, {ISTR}, v9
    v_add_u32 v15, v14, v{VJ12}
    s_mul_i32 s8, s2, s{S_T2}
    s_mul_i32 s{S_T1}, s{S_WAVE}, 5120
    s_add_u32 s8, s8, s{S_T1}
    s_add_u32 s9, s8, 4096
    s_movk_i32 s4, 625
    s_mov_b32 s5, {MAGIC625}
    s_movk_i32 s7, 128
    v_cmp_eq_u32 s[10:11], 0, v10''')
    a(f's_waitcnt vmcnt({nU + nW + 2})')
    stamp(2)
    def em(j, s):
        if j == 4:
            a('s_mov_b64 exec, s[88:89]')
        a(s)
        if j == 4:
            a('s_mov_b64 exec, -1')
    for j in range(5):
        a(f'v_lshl_or_b32 v{BIN+j}, v{DSTV+j}, 4, 15')
    for j in range(5):
        a(f'v_mul_hi_u32 v{BIN+j}, v{BIN+j}, s5')
    for j in range(5):
        a(f'v_mul_u32_u24 v{REC1+j}, s4, v{BIN+j}')
        a(f'v_mul_u32_u24 v{BIN+j}, {ISTR}, v{BIN+j}')
        em(j, f'ds_add_rtn_u32 v{RK+j}, v{BIN+j}, v8 offset:{L_IMG}')
    for j in range(5):
        a(f'v_lshrrev_b32 v{REC1+j}, 4, v{REC1+j}')
        a(f'v_sub_u32 v{REC1+j}, v{DSTV+j}, v{REC1+j}')
        a(f'v_lshl_or_b32 v{REC1+j}, v{REC1+j}, 26, v{EB+j}')
    a(f's_waitcnt vmcnt({nU + nW})')
    for j in range(5):
        a(f'v_or_b32 v{REC1+j}, v{REC1+j}, v{SRCV+j}')
    a('s_waitcnt lgkmcnt(0)')
    for j in range(5):
        a(f'v_min_u32 v{RK+j}, s7, v{RK+j}')
        a(f'v_add_u32 v{RK+j}, v{BIN+j}, v{RK+j}')
        em(j, f'ds_write_b32 v{RK+j}, v{REC1+j} offset:{L_IMG}')
    a(f'''s_add_u32 s{S_TAG}, s{S_TAG}, 1
    s_lshl_b32 s{S_KX}, s{S_TAG}, 14
    v_mov_b32 v16, s{S_KX}
    v_cndmask_b32 v16, 0, v16, s[10:11]''')
    for k in range(5):
        a(f'v_mov_b32 v{RO+4*k+3}, s{S_TAG}')
    a(f'''s_waitcnt lgkmcnt(0)
    s_barrier''')
    stamp(3)
    a(f'''ds_read_b96 {vr(RO,3)}, v15 offset:{L_IMG}
    ds_read_b32 v17, v14 offset:{L_IMG}
    ds_read_b96 {vr(RO+4,3)}, v15 offset:{L_IMG + 24}
    ds_read_b96 {vr(RO+8,3)}, v15 offset:{L_IMG + 48}
    ds_read_b96 {vr(RO+12,3)}, v15 offset:{L_IMG + 72}
    ds_read_b96 {vr(RO+16,3)}, v15 offset:{L_IMG + 96}
    s_waitcnt lgkmcnt(5)
    v_xor_b32 v{RO}, v{RO}, v16
    buffer_store_dwordx4 {vr(RO,4)}, v12, {sr(S_WS)}, s8 offen{SC}
    s_waitcnt lgkmcnt(3)
    buffer_store_dwordx4 {vr(RO+4,4)}, v12, {sr(S_WS)}, s8 offen offset:1024{SC}
    v_cmp_lt_u32 s[12:13], 48, v17
    v_cmp_lt_u32 vcc, 72, v17
    s_or_b64 exec, s[12:13], 3
    s_waitcnt lgkmcnt(2)
    buffer_store_dwordx4 {vr(RO+8,4)}, v12, {sr(S_WS)}, s8 offen offset:2048{SC}
    s_or_b64 exec, vcc, 3
    s_waitcnt lgkmcnt(1)
    buffer_store_dwordx4 {vr(RO+12,4)}, v12, {sr(S_WS)}, s8 offen offset:3072{SC}
    v_cmp_lt_u32 vcc, 96, v17
    s_cbranch_vccnz L_store4
    L_store4_back:
    s_mov_b64 exec, -1''')
    stamp(4)
    nS = 4
    def poll_loads():
        for k in range(4):
            a(f'buffer_load_dwordx4 {vr(R+4*k,4)}, v{VRO}, {sr(S_WS)}, 0 offen offset:{1024*k}{SC}')
    if o.warm_late:
        nS += warms()
    if o.pp == 0:
        poll_loads(); nS += 4
    a(f'''s_waitcnt vmcnt({nS + nW + nU - 1})
    s_mov_b32 s{S_T1}, 0x{f32(-LOG2E):08x}
    s_mov_b32 s{S_T2}, 0xffff0000''')
    for k in range(4):
        a(f'v_lshlrev_b32 v{SCT+2*k}, 16, v{W2RAW+k}\nv_and_b32 v{SCT+1+2*k}, s{S_T2}, v{W2RAW+k}')
    for k in range(8):
        a(f'v_mul_f32 v{SCT+k}, s{S_T1}, v{SCT+k}')
    for k in range(4):
        a(f'v_cvt_pk_bf16_f32 v{W2RAW+k}, v{SCT+2*k}, v{SCT+1+2*k}')
    a(f'''v_add_u32 v9, {L_STG}, v2
    ds_write_b128 v9, {vr(W2RAW,4)}
    s_cmp_eq_u32 s{S_WAVE}, 3
    s_cselect_b32 s{S_T1}, 0x{f32(-LN2):08x}, 1.0
    s_lshl_b32 s{S_T3}, s{S_WAVE}, 8
    v_add_u32 v9, s{S_T3}, v{L4}
    s_waitcnt vmcnt({nS + nW + 8})
    v_lshlrev_b32 v{PDV}, 16, v{PDV}
    v_mul_f32 v{PDV}, s{S_T1}, v{PDV}
    s_cmp_ge_u32 s{S_WAVE}, 4
    s_cbranch_scc1 L_nopd
    ds_write_b32 v9, v{PDV} offset:{L_PD}
    L_nopd:
    s_and_b32 s{S_T1}, s{S_WAVE}, 1
    s_lshl_b32 s{S_T1}, s{S_T1}, 6
    v_add_u32 v13, s{S_T1}, v{TRA}
    s_waitcnt vmcnt({nS + nW}) lgkmcnt(0)
    s_barrier''')
    stamp(5)
    if o.pp == 1:
        poll_loads()
    WF = 64; DA = 80; WG = 96; HRA = 112; HRB = 128
    def trfrag(dst, addr, base):
        a(f'ds_read_b64_tr_b16 {vr(dst,2)}, v{addr} offset:{base}')
        a(f'ds_read_b64_tr_b16 {vr(dst+2,2)}, v{addr} offset:{base+512}')
    a(f'''s_cmp_lt_u32 s{S_WAVE}, 4
    s_cbranch_scc1 L_noag
    v_lshlrev_b32 v9, 7, v{F}
    v_lshl_add_u32 v9, v{HH}, 4, v9
    s_bfe_u32 s{S_T2}, s{S_WAVE}, 0x10001
    s_lshl_b32 s{S_T2}, s{S_T2}, 12
    s_add_u32 s{S_T2}, s{S_T2}, {L_HR}
    v_add_u32 v9, s{S_T2}, v9''')
    for s in range(4):
        a(f'ds_read_b128 {vr(HRA+s*4,4)}, v9 offset:{s*32}')
        trfrag(WF + s * 4, 13, 8192 + s * 2048)
    for s in range(4):
        a(f's_waitcnt lgkmcnt({9-3*s})')
        a(mfma(DA, HRA + s * 4, WF + s * 4, None if s == 0 else DA))
    a('L_noag:')
    a(f'''s_cmp_ge_u32 s{S_WAVE}, 6
    s_cbranch_scc1 L_nouh
    v_and_b32 v10, 15, v{V_LANE}
    v_lshlrev_b32 v10, 7, v10
    v_lshrrev_b32 v11, 4, v{V_LANE}
    v_lshl_add_u32 v10, v11, 4, v10
    s_lshr_b32 s{S_T2}, s{S_WAVE}, 1
    s_lshl_b32 s{S_T2}, s{S_T2}, 11
    s_add_u32 s{S_T2}, s{S_T2}, {L_HR}
    v_add_u32 v10, s{S_T2}, v10''')
    for s in range(2):
        a(f'ds_read_b128 {vr(HRB+s*4,4)}, v10 offset:{s*64}')
    for aa in range(2):
        for s in range(2):
            trfrag(WG + aa * 8 + s * 4, TRB, 16384 + s * 4096 + aa * 8)
    a('s_waitcnt lgkmcnt(0)')
    for s in range(2):
        for aa in range(2):
            a(mfma16(UH + aa * 4, WG + aa * 8 + s * 4, HRB + s * 4, None if s == 0 else UH + aa * 4))
    a(f'''s_bitcmp1_b32 s{S_WAVE}, 0
    s_cselect_b64 vcc, -1, 0''')
    for k in range(4):
        a(f'v_cndmask_b32 v{HRES+k}, v{HRB+k}, v{HRB+4+k}, vcc')
    a('L_nouh:')
    XW = 144; XR = 136
    a(f'''v_mul_u32_u24 v9, {1024+128}, v{HH}
    v_sub_u32 v9, v{TRA}, v9
    v_lshlrev_b32 v10, 4, v{HH}
    v_add_u32 v9, {(L_XW + 128 - L_STG) & 0xffffffff}, v9
    ds_read_b64_tr_b16 {vr(XR,2)}, v9
    ds_read_b64_tr_b16 {vr(XR+2,2)}, v9 offset:64''')
    for i in range(8):
        a(f'ds_read_b128 {vr(WXT+4*i,4)}, v10 offset:{L_WXF + 32*i}')
    a(f'''s_mov_b32 s{S_T2}, 0x{f32(-LOG2E):08x}
    s_mov_b32 s{S_T1}, 0xffff0000
    s_waitcnt lgkmcnt(8)''')
    for k in range(4):
        a(f'v_lshlrev_b32 v{XW+2*k}, 16, v{XR+k}\nv_and_b32 v{XW+2*k+1}, s{S_T1}, v{XR+k}')
    for t in range(2):
        for s in range(4):
            trfrag(W2 + t * 16 + s * 4, TRA, s * 2048 + t * 64)
    for k in range(8):
        a(f'v_mul_f32 v{XW+k}, s{S_T2}, v{XW+k}')
    for t in range(2):
        b = XW + t * 4
        a(f'''v_cvt_pk_bf16_f32 v{XB+t*4+2}, v{b}, v{b+1}
        v_cvt_pk_bf16_f32 v{XB+t*4+3}, v{b+2}, v{b+3}''')
    a(f's_mov_b64 exec, {EXEC_UP}')
    for t in range(2):
        a(f'v_cvt_pk_bf16_f32 v{XB+t*4+2}, 0, v{XW+t*4}')
    for t in range(2):
        a(f'v_sub_f32 v{XW+t*4}, v{XW+t*4}, v{XB+t*4+2}')
    for t in range(2):
        a(f'v_cvt_pk_bf16_f32 v{XB+t*4+3}, 0, v{XW+t*4}')
    a(f'''s_mov_b64 exec, -1
    s_cmp_lt_u32 s{S_WAVE}, 4
    s_cbranch_scc1 L_noag2
    s_and_b32 s{S_T1}, s{S_WAVE}, 1
    s_lshl_b32 s{S_T1}, s{S_T1}, 9
    s_bfe_u32 s{S_T3}, s{S_WAVE}, 0x10001
    s_lshl_b32 s{S_T3}, s{S_T3}, 12
    s_add_u32 s{S_T1}, s{S_T1}, s{S_T3}
    v_lshl_add_u32 v3, v{V_LANE}, 3, s{S_T1}''')
    for k in range(16):
        a(f'v_mul_f32 v{DA+k}, s{S_T2}, v{DA+k}')
    for k in range(8):
        a(f'v_cvt_pk_bf16_f32 v{DA+k}, v{DA+2*k}, v{DA+2*k+1}')
    a(f'''ds_write_b64 v3, {vr(DA,2)} offset:{L_AG}
    s_bitcmp1_b32 s{S_WAVE}, 1
    s_cbranch_scc1 L_noag2''')
    for q in range(1, 4):
        a(f'ds_write_b64 v3, {vr(DA+2*q,2)} offset:{L_AG + q*1024}')
    a('L_noag2:')
    if o.pp == 2:
        poll_loads()
    M = lambda r: f's[{S_MASK+2*r}:{S_MASK+2*r+1}]'
    a(f'''v_mov_b32 v3, s{S_KX}
    v_mov_b32 v2, 16
    s_mov_b32 s{S_IT}, 0
    s_movk_i32 s18, 0x4000
    s_movk_i32 s19, 72
    s_waitcnt lgkmcnt(0)''')
    stamp(6)
    a(f'''L_chk:
    s_waitcnt vmcnt(0)
    v_xor_b32_dpp v{VH}, v{R}, v3 quad_perm:[0,0,2,2] row_mask:0xf bank_mask:0xf
    v_cmp_eq_u32 s[4:5], s{S_TAG}, v{R+3}
    v_cmp_eq_u32 s[6:7], s{S_TAG}, v{R+7}
    v_cmp_eq_u32 s[8:9], s{S_TAG}, v{R+11}
    v_cmp_eq_u32 s[10:11], s{S_TAG}, v{R+15}
    v_cmp_gt_u32 vcc, s18, v{VH}
    v_cmp_ge_u32 s[14:15], 48, v{VH}
    v_cmp_ge_u32 s[16:17], s19, v{VH}
    s_and_b64 s[4:5], s[4:5], s[6:7]
    s_and_b64 s[4:5], s[4:5], vcc
    v_cmp_lt_u32 vcc, 96, v{VH}
    s_or_b64 s[8:9], s[8:9], s[14:15]
    s_or_b64 s[10:11], s[10:11], s[16:17]
    s_and_b64 s[8:9], s[8:9], s[10:11]
    s_nand_b64 s[4:5], s[4:5], s[8:9]
    s_cbranch_scc1 L_miss
    L_arrived:''')
    if 'rawtest' in XP:
        a(f's_mov_b32 s4, 0x0c000030\ns_mov_b32 s5, 0x00c00000\ns_branch L_timeout')
    a(f'''L_arr2:
    s_cbranch_vccnz L_ext
    L_hj:
    v_sub_u32 v{VHJ}, v{VH}, v{VJ12}
    v_mov_b32 v3, 0xbf80''')
    stamp(7)
    for r in range(9):
        k, m = divmod(r, 3)
        a(f'v_cmp_lt_i32 {M(r)}, {24*k + 4*m}, v{VHJ}')
    a(f'''v_cmp_lt_i32 {M(9)}, s19, v{VHJ}
    s_and_b32 s{S_MASK}, s{S_MASK}, 0xaaaaaaaa
    s_and_b32 s{S_MASK+1}, s{S_MASK+1}, 0xaaaaaaaa
    s_cmp_lt_u32 s{S_RND}, 8
    s_cbranch_scc1 L_gate
    L_gate_back:
    s_cmp_lg_u64 {M(9)}, 0
    s_cselect_b32 s{S_EXT}, 1, 0
    L_count:''')
    def rec(r): return R + 4 * (r // 3) + r % 3
    def e(r, i): return EN + 4 * r + i
    def t0(r): return TT + 2 * (r % 9)
    def t1(r): return TT + 2 * (r % 9) + 1
    def stA(k):
        for r in range(3*k, 3*k+3):
            a(f'v_and_b32 v{t0(r)}, s{S_SRCM}, v{rec(r)}')
            a(f'v_and_b32_sdwa v{KEY+r}, v{rec(r)}, s{S_FC} dst_sel:DWORD dst_unused:UNUSED_PAD src0_sel:BYTE_3 src1_sel:DWORD')
            a(f'v_mad_u32_u24 v{t0(r)}, v{t0(r)}, 6, s{S_PB}')
            a(f'v_lshlrev_b32 v{t1(r)}, 3, v{t0(r)}')
            a(f'v_and_b32 v{t0(r)}, -4, v{t0(r)}')
    def stL(q, r):
        a(f's_mov_b64 exec, {M(r)}')
        q.op(f'ds_add_rtn_u32 v{RANK+r}, v{KEY+r}, v2 offset:{L_CNT}', False)
        a('s_bitset1_b32 exec_lo, 0')
        q.op(f'ds_read2_b32 {vr(e(r,2),2)}, v{t0(r)} offset0:0 offset1:1')
        q.op(f'ds_read2st64_b32 {vr(e(r,0),2)}, v{KEY+r} offset0:{L_PD//256} offset1:{L_PD//256+1}')
        return q.op(f'ds_read_b32 v{t0(r)}, v{KEY+r} offset:{L_PD+512}')
    def stC(q, k, ids):
        rs = range(3*k, 3*k+3)
        for r in rs:
            a(f'v_lshlrev_b32 v{KXT+r%3}, v{t1(r)}, v3')
        for r in rs:
            q.wait(ids[r])
            a(f'v_alignbit_b32 v{t1(r)}, v{e(r,3)}, v{e(r,2)}, v{t1(r)}')
            a(f'v_dot2_f32_bf16 v{e(r,0)}, v{e(r,2)}, v{KXT+r%3}, v{e(r,0)}')
            a(f'v_dot2_f32_bf16 v{t0(r)}, v{e(r,3)}, v{KXT+r%3}, v{t0(r)}')
            a(f'v_dot2_f32_bf16 v{e(r,1)}, v{t1(r)}, s{S_C66}, v{e(r,1)}')
        for r in rs:
            a(f'v_bfe_u32 v{KXT+r%3}, v{rec(r)}, 14, 12')
        for r in rs:
            a(f'v_cvt_pk_bf16_f32 v{e(r,2)}, 1.0, v{e(r,0)}')
            a(f'v_cvt_pk_bf16_f32 v{e(r,3)}, v{e(r,1)}, v{t0(r)}')
        for r in rs:
            a(f'v_dot2_f32_bf16 v{t0(r)}, v{e(r,3)}, v{e(r,3)}, -1.0')
        for r in rs:
            a(f'v_dot2_f32_bf16 v{t0(r)}, v{e(r,2)}, v{e(r,2)}, v{t0(r)}')
        for r in rs:
            a(f'v_add_u32 v{KXT+r%3}, v{KXT+r%3}, v{VCB}')
        for r in rs:
            a(f'v_cvt_pk_bf16_f32 v{e(r,1)}, 0, v{t0(r)}')
            a(f'v_and_or_b32 v{e(r,0)}, v{rec(r)}, s{S_SMSK}, v{KXT+r%3}')
        for r in rs:
            a(f'v_and_or_b32 v{e(r,1)}, v{rec(r)}, s{S_SRCM}, v{e(r,1)}')
    def gather(ks):
        q = LQ(a); ids = {}
        stA(ks[0])
        for r in range(3*ks[0], 3*ks[0]+3):
            ids[r] = stL(q, r)
        a('s_mov_b64 exec, -1')
        for i, k in enumerate(ks):
            if i + 1 < len(ks):
                kn = ks[i+1]
                stA(kn)
                q.wait(ids[3*k])
                for r in range(3*kn, 3*kn+3):
                    ids[r] = stL(q, r)
                a('s_mov_b64 exec, -1')
            stC(q, k, ids)
    gather([0, 1, 2])
    a(f'''s_cmp_lg_u32 s{S_EXT}, 0
    s_cbranch_scc1 L_extA
    L_extA_back:
    s_waitcnt lgkmcnt(0)
    s_barrier
    ds_read_b32 v176, v{L4} offset:{L_CNT}
    ds_read_b32 v178, v{L4} offset:{L_RAWM}
    s_waitcnt lgkmcnt(1)
    v_mov_b32 v177, v176''')
    stamp(8)
    scan64(a, 177)
    a('s_waitcnt lgkmcnt(0)\nv_cmp_ne_u32 vcc, 0, v178')
    for g in range(5):
        a(f'v_readlane_b32 s{4+g}, v177, {8*g+7}')
    a('v_sub_u32 v177, v177, v176')
    a('s_mov_b32 s9, 0')
    for g in range(5):
        if g == 0:
            a('s_add_u32 s16, s4, 511')
        else:
            a(f's_sub_u32 s16, s{4+g}, s{3+g}\ns_add_u32 s16, s16, 511')
        a(f's_andn2_b32 s16, s16, 511\ns_add_u32 s{10+g}, s{9+g}, s16')
    a(f'''s_and_b32 s15, vcc_lo, 0xff
    s_cmp_gt_u32 s14, {CAP*16}
    s_cselect_b32 s16, 1, s15
    s_or_b32 s17, s2, s{S_SLOW}
    s_cbranch_scc0 L_bump
    L_bump_back:
    s_cmp_eq_u32 s{S_SLOW}, 0
    s_cselect_b32 s16, s16, 0
    s_cmp_lg_u32 s16, 0
    s_cbranch_scc1 L_goslow
    L_goslow_back:''')
    for g in range(1, 5):
        a(f's_sub_u32 s16, s{9+g}, s{3+g}')
        a(f's_mov_b32 exec_lo, 0x{0xff << (8*g):x}\ns_mov_b32 exec_hi, 0' if g < 4 else f's_mov_b32 exec_lo, 0\ns_mov_b32 exec_hi, 0xff')
        a(f'v_add_u32 v177, s16, v177')
    a('s_mov_b64 exec, -1')
    for r in range(9):
        a(f'ds_bpermute_b32 v{KEY+r}, v{KEY+r}, v177')
    a(f's_mov_b32 s16, 0\ns_mov_b32 s17, 0')
    for g in range(5):
        if g == 0:
            a('s_mov_b32 s19, s4')
        else:
            a(f's_sub_u32 s19, s{4+g}, s{3+g}\ns_add_u32 s19, s19, s{9+g}')
        a(f's_cmp_eq_u32 s{S_WAVE}, {g}\ns_cselect_b32 s16, s19, s16\ns_cselect_b32 s17, s{10+g}, s17')
    a(f'''v_lshl_add_u32 v179, v{V_LANE}, 4, s16
    v_cmp_gt_u32 vcc, s17, v179
    v_mov_b32 v180, s{S_SMSK}
    v_mov_b32 v181, 0''')
    def place(rs, first):
        for i, r in enumerate(rs):
            if i == 0 or True:
                a(f's_waitcnt lgkmcnt({len(rs) - 1 - i})') if first else None
            a(f'v_add_u32 v{KEY+r}, v{KEY+r}, v{RANK+r}')
        for r in rs:
            a(f's_mov_b64 exec, {M(r)}')
            a(f'ds_write_b128 v{KEY+r}, {vr(e(r,0),4)} offset:{L_ENT}')
    place(list(range(9)), True)
    a(f'''s_mov_b64 exec, vcc
    ds_write_b64 v179, v[180:181] offset:{L_ENT}
    s_mov_b64 exec, -1
    s_cmp_lg_u32 s{S_EXT}, 0
    s_cbranch_scc1 L_extB
    L_extB_back:''')
    for g in range(6):
        a(f's_lshr_b32 s{S_TB+g}, s{9+g}, 9')
    a(f'''s_and_b32 s16, s{S_WAVE}, 3
    s_mul_i32 s17, s16, s{S_TB+5}
    s_add_u32 s18, s17, s{S_TB+5}
    s_lshr_b32 s17, s17, 2
    s_lshr_b32 s18, s18, 2
    s_add_u32 s19, s17, s18
    s_add_u32 s19, s19, 1
    s_lshr_b32 s19, s19, 1
    s_cmp_lt_u32 s{S_WAVE}, 4
    s_cselect_b32 s{S_T}, s17, s19
    s_cselect_b32 s{S_END}, s19, s18
    s_lshl_b32 s{S_STG}, s{S_WAVE}, 12
    s_add_u32 s{S_STG}, s{S_STG}, {L_STG}
    s_lshl_b32 s16, s{S_T}, 9
    s_add_u32 s17, s16, {L_ENT}
    s_lshl_b32 s{S_M0A}, s{S_T}, 8
    s_add_u32 s{S_M0A}, s{S_M0A}, {L_ATT}
    v_lshrrev_b32 v2, 3, v{V_LANE}
    v_lshl_add_u32 v{PWD}, v2, 4, s17
    v_bfe_u32 v2, v{V_LANE}, 2, 2
    v_lshrrev_b32 v3, 5, v{V_LANE}
    v_lshl_add_u32 v2, v3, 2, v2
    v_lshl_add_u32 v{PWS}, v2, 4, s17
    v_bfe_u32 v2, v{V_LANE}, 4, 1
    v_and_b32 v3, 3, v{V_LANE}
    v_lshl_add_u32 v2, v2, 2, v3
    v_lshl_or_b32 v{VBS}, v2, 26, v{PWS}
    v_and_b32 v2, 31, v{V_LANE}
    v_lshl_add_u32 v{PWR}, v2, 4, s16
    v_lshl_add_u32 v{PX}, v2, 3, s{S_M0A}
    v_add_u32 v3, {L_ENT + 4}, v{PWR}
    v_cndmask_b32 v{PX}, v{PX}, v3, {EXEC_UP}
    v_lshrrev_b32 v2, 1, v{V_LANE}
    v_lshl_add_u32 v{PXA}, v2, 4, s16''')
    def groupof(tile_sgpr, gdst):
        s = f's_mov_b32 s{gdst}, 0\ns_mov_b32 s{S_NB}, s{S_TB+1}\n'
        for j in range(1, 5):
            s += f's_cmp_ge_u32 s{tile_sgpr}, s{S_TB+j}\ns_cselect_b32 s{gdst}, {j}, s{gdst}\ns_cselect_b32 s{S_NB}, s{S_TB+j+1}, s{S_NB}\n'
        return s
    def xbload(gs):
        return f"""s_lshl_b32 s{S_T1}, s{gs}, 10
        v_lshl_add_u32 v{TMPA}, v{V_LANE}, 3, s{S_T1}
        ds_read_b64 {vr(XB,2)}, v{TMPA} offset:{L_AG}
        ds_read_b64 {vr(XB+4,2)}, v{TMPA} offset:{L_AG+512}"""
    a(groupof(S_T, S_G))
    a(f"""s_mov_b32 s{S_GP}, s{S_G}
    s_lshl_b32 s{S_T1}, s{S_G}, 29
    v_add_u32 v{VBS}, s{S_T1}, v{VBS}""")
    a(xbload(S_G))
    a(f'''s_waitcnt lgkmcnt(0)
    s_barrier''')
    stamp(9)
    a(f'''s_cmp_ge_u32 s{S_T}, s{S_END}
    s_cbranch_scc1 L_fin''')
    def wd_reads(base):
        return [f'ds_read2_b32 {vr(WD,2)}, v{PWD} offset0:{base+1} offset1:{base+33}',
                f'ds_read2_b32 {vr(WD+2,2)}, v{PWD} offset0:{base+65} offset1:{base+97}']
    def hdma():
        out = []
        for i in range(4):
            out.append(f'v_and_b32 v{DP+2*i}, s{S_SRCM}, v{WD+i}')
        for i in range(4):
            out.append(f's_add_u32 m0, s{S_STG}, {i*1024}\ns_nop 0\nbuffer_load_dwordx4 {vr(DP+2*i,2)}, {sr(S_H)}, 0 idxen offen lds')
        return out
    def oh_addr():
        return [f'v_and_b32_sdwa v{WR}, v{WR}, 28 dst_sel:DWORD dst_unused:UNUSED_PAD src0_sel:BYTE_3 src1_sel:DWORD',
                f'v_xor_b32 v{WR}, v{WR}, v{OHB}']
    xi_mask = f'v_and_b32 v{XI}, 0xfffff, v{XI}'
    def a_reads():
        r = [f'ds_read_b128 {vr(AR+4*s,4)}, v{AADDR+s}' for s in range(4)]
        r.append(f'ds_read2_b32 {vr(X,2)}, v{WR} offset0:0 offset1:8')
        r.append(f'ds_read2_b32 {vr(X+2,2)}, v{PX} offset0:0 offset1:1')
        return r
    xfix = f'v_cndmask_b32 v{X+3}, v{X+3}, v{X+2}, {EXEC_UP}'
    attr_dma = f's_mov_b32 m0, s{S_M0A}\ns_add_u32 s{S_M0A}, s{S_M0A}, 256\nbuffer_load_dword {vr(XI,2)}, {sr(S_ATT)}, 0 idxen offen lds'
    def mf1(t):
        r = [mfma(Y + 16 * t, AR + 4 * s, W2 + t * 16 + s * 4, None if s == 0 else Y + 16 * t) for s in range(4)]
        r.append(mfma(Y + 16 * t, X, XB + 4 * t, Y + 16 * t))
        return r
    def mf2(t):
        return [mfma(ACC + 16 * t, T + 16 * t + 4 * s, S + 4 * s, ACC + 16 * t) for s in range(2)]
    def plus1(t):
        return f'v_mfma_f32_32x32x8_bf16 {vr(T+16*t,16)}, {vr(ONES,2)}, {vr(ONES,2)}, {vr(T+16*t,16)}'
    def weave(base, ins):
        out = []
        for i, x in enumerate(base):
            out += ins.get(i, [])
            out.append(x)
        out += ins.get(len(base), [])
        return out
    exps = lambda t: [f'v_exp_f32 v{T+16*t+i}, v{Y+16*t+i}' for i in range(15, -1, -1)]
    rcps = lambda t: [f'v_rcp_f32 v{T+16*t+i}, v{T+16*t+i}' for i in range(16)]
    muls = lambda t: [f'v_mul_f32 v{T+16*t+i}, v{T+16*t+i}, v{Y+16*t+i}' for i in range(16)]
    cvts = lambda t: [f'v_cvt_pk_bf16_f32 v{T+16*t+j}, v{T+16*t+2*j}, v{T+16*t+2*j+1}' for j in range(8)]
    def s_reads():
        r = []
        for q in range(4):
            r.append(f'v_bitop3_b32 v{WS_+q}, v{WS_+q}, s{S_SMSK}, v{VBS} bitop3:0x6a')
        for q in range(4):
            r.append(f'ds_read_b64_tr_b16 {vr(S+2*q,2)}, v{WS_+q} offset:{128*q+8}')
        return r
    def flush(gs):
        s = f"""s_add_u32 s{S_T2}, s{gs}, s{S_ORD}
        s_mul_i32 s{S_T1}, s{S_T2}, {SLOT}
        v_add_u32 v{TMPA}, s{S_T1}, v{VSL}
        v_add_u32 v{TMPB}, s{S_T1}, v{VSP}
        v_mul_f32 v2, v{WXT}, v{ACC}
        v_mul_f32 v3, v{WXT+16}, v{ACC+16}
        s_mov_b32 exec_lo, 0x11111111
        s_mov_b32 exec_hi, 0x11111111
        """
        for t in range(2):
            for q in range(4):
                s += f'ds_write_b128 v{TMPA}, {vr(ACC+16*t+4*q,4)} offset:{128*t+32*q}\n'
        s += 's_mov_b64 exec, -1\n'
        for k in range(1, 16):
            s += f'v_fmac_f32 v2, v{WXT+k}, v{ACC+k}\nv_fmac_f32 v3, v{WXT+16+k}, v{ACC+16+k}\n'
        s += f"""s_lshl_b32 s{S_T2}, 1, s{S_T2}
        s_lshl_b32 s{S_T1}, s{gs}, 2
        v_add_f32 v2, v2, v3
        ds_write_b32 v{TMPB}, v2
        v_mov_b32 v{TMPA}, s{S_T1}
        v_mov_b32 v3, s{S_T2}
        s_mov_b64 exec, 1
        ds_or_b32 v{TMPA}, v3 offset:{L_MASKG}
        s_mov_b64 exec, -1
        """
        return s

    a(wd_reads(0))
    for d in range(3):
        a(f'ds_read_b32 v{160+2*d}, v{PXA} offset:{L_ENT + 512*d}')
    a(f'ds_read_b32 v{WR}, v{PWR} offset:{L_ENT}')
    for d in range(3):
        a(f'v_mov_b32 v{161+2*d}, v{XI+1}')
    a('s_waitcnt lgkmcnt(4)')
    a(hdma())
    a(wd_reads(128))
    a('s_waitcnt lgkmcnt(2)')
    for d in range(3):
        a(f'v_and_b32 v{160+2*d}, 0xfffff, v{160+2*d}')
    for d in range(3):
        a(f's_mov_b32 m0, s{S_M0A}\ns_add_u32 s{S_M0A}, s{S_M0A}, 256\nbuffer_load_dword {vr(160+2*d,2)}, {sr(S_ATT)}, 0 idxen offen lds')
    a(oh_addr())
    a(f'v_add_u32 v{PWD}, 1024, v{PWD}')
    for k in range(32):
        a(f'v_mov_b32 v{ACC+k}, 0')
    for k in range(8):
        a(f'v_mov_b32 v{S+k}, 0')
    for k in range(8):
        a(f'v_mov_b32 v{T+16+k}, 0')
    a('s_waitcnt vmcnt(2)')
    a(a_reads())
    a(f"""s_add_u32 s{S_T1}, s{S_T}, 1
    s_cmp_lt_u32 s{S_T1}, s{S_END}
    v_add_u32 v{PX}, v{PX}, v{PXI}
    s_waitcnt lgkmcnt(0)
    s_cbranch_scc0 L_fill_nodma""")
    a(hdma())
    a('L_fill_nodma:')
    a(f'buffer_load_dword v{VWARM}, v{L4}, {sr(S_POS)}, 0 offen')
    a(xfix)
    stamp(10)
    e0_top = [f'ds_read_b32 v{WR}, v{PWR} offset:{L_ENT+512}'] + wd_reads(0) + \
             [f'ds_read2_b32 {vr(WS_,2)}, v{PWS} offset0:0 offset1:32', f'ds_read2_b32 {vr(WS_+2,2)}, v{PWS} offset0:64 offset1:96',
              f'ds_read_b32 v{XI}, v{PXA} offset:{L_ENT+3*512}']
    a(e0_top)
    a(mf1(0))
    a(mf1(1))
    a('s_setprio 1\ns_nop 5')
    a(exps(0))
    a('s_waitcnt lgkmcnt(0)')
    a(oh_addr() + [xi_mask])
    a(plus1(0))
    a('s_nop 11')
    r0_tail = ['s_waitcnt vmcnt(1)'] + a_reads()
    a(weave(rcps(0), {8: r0_tail}))
    a('s_branch L_E1')
    a('.p2align 6\nL_loop:')
    m2 = mf2(0)
    a(weave(exps(0), {0: e0_top[:3], 1: [m2[0]], 2: e0_top[3:], 5: [m2[1]]}))
    a('s_setprio 0')
    a(weave(muls(1), {2: [plus1(0)], 16: ['s_waitcnt lgkmcnt(0)'] + oh_addr() + [xi_mask]}))
    a('s_setprio 1')
    m1 = mf1(1)
    a(weave(cvts(1), {0: [m1[0]], 6: [m1[1]]}))
    a(weave(rcps(0), {2: [m1[2]], 5: [m1[3]], 8: [m1[4]], 9: r0_tail}))
    a('L_E1:')
    m2 = mf2(1)
    dma_blk = [f's_add_u32 s{S_T1}, s{S_T}, 2\ns_cmp_lt_u32 s{S_T1}, s{S_END}\ns_waitcnt lgkmcnt(4)\ns_cbranch_scc0 L_nodma'] + hdma() + \
              [f'L_nodma:\n' + attr_dma]
    grp = [f's_add_u32 s{S_T3}, s{S_T}, 1\ns_mov_b32 s{S_GN}, s{S_G}\ns_cmp_ge_u32 s{S_T3}, s{S_NB}\ns_cbranch_scc1 L_newgrp\nL_newgrp_back:']
    a(weave(exps(1), {1: [m2[0]], 5: [m2[1]], 6: s_reads(), 8: dma_blk, 14: grp}))
    a('s_setprio 0')
    bumps = [xfix, f'v_add_u32 v{PWD}, 0x200, v{PWD}', f'v_add_u32 v{PWS}, 0x200, v{PWS}', f'v_add_u32 v{PWR}, 0x200, v{PWR}',
             f'v_add_u32 v{PXA}, 0x200, v{PXA}', f'v_add_u32 v{PX}, v{PX}, v{PXI}',
             f's_sub_u32 s{S_DLT}, s{S_GN}, s{S_G}\ns_lshl_b32 s{S_DLT}, s{S_DLT}, 29\ns_add_u32 s{S_DLT}, s{S_DLT}, 0x200\nv_add_u32 v{VBS}, s{S_DLT}, v{VBS}']
    a(weave(muls(0), {2: [plus1(1)], 16: bumps}))
    a('s_setprio 1')
    m1 = mf1(0)
    a(weave(cvts(0), {0: [m1[0]], 6: [m1[1]]}))
    tail = [f's_cmp_lg_u32 s{S_GP}, s{S_G}\ns_cbranch_scc1 L_flush\nL_flush_back:\ns_mov_b32 s{S_GP}, s{S_G}\ns_mov_b32 s{S_G}, s{S_GN}\n'
            f's_add_u32 s{S_T}, s{S_T}, 1\ns_waitcnt lgkmcnt(0)\ns_cmp_lt_u32 s{S_T}, s{S_END}\ns_cbranch_scc1 L_loop']
    a(weave(rcps(1), {2: [m1[2]], 5: [m1[3]], 8: [m1[4]], 16: tail}))
    a('s_setprio 0')
    m2a = mf2(0); m2b = mf2(1)
    a(weave(muls(1), {1: [m2a[0]], 8: [m2a[1]]}))
    a(cvts(1))
    a('s_nop 1')
    a(m2b)
    a('s_nop 11')
    a(flush(S_GP))
    a('L_fin:')
    stamp(11)
    SUM = 72; TA = 88; TB = 104; WQ = 120; VM = 71
    a(f"""s_cmp_ge_u32 s{S_WAVE}, 6
    s_cbranch_scc1 L_posw""")
    for aa in range(2):
        for s in range(2):
            trfrag(WQ + aa * 8 + s * 4, TRB, L_WH2 - L_STG + s * 4096 + aa * 8)
    a(f"""v_and_b32 v64, 15, v{V_LANE}
    v_lshrrev_b32 v65, 4, v{V_LANE}
    s_lshr_b32 s16, s{S_WAVE}, 1
    s_lshl_b32 s18, s16, 4
    v_add_u32 v66, s18, v64
    v_lshrrev_b32 v67, 3, v66
    v_lshlrev_b32 v67, 2, v67
    v_and_b32 v68, 7, v64
    v_mul_u32_u24 v68, {NSTR}, v68
    v_lshl_add_u32 v68, v65, 5, v68
    v_add_u32 v68, {L_SLOT}, v68
    v_lshlrev_b32 v69, 7, v66
    v_lshl_add_u32 v69, v65, 4, v69
    s_and_b32 s{S_T2}, s{S_WAVE}, 1
    s_lshl_b32 s17, s{S_N0}, 7
    s_lshl_b32 s{S_T1}, s{S_T2}, 6
    s_add_u32 s17, s17, s{S_T1}
    s_movk_i32 s18, {SLOT}
    s_mov_b32 s19, 0x{f32(-LN2):08x}
    s_mov_b32 s4, 0xffff0000
    s_mov_b32 s5, 0x{f32(-LOG2E):08x}""")
    for k in range(4):
        a(f'v_lshlrev_b32 v{136+2*k}, 16, v{HRES+k}\nv_and_b32 v{137+2*k}, s4, v{HRES+k}')
    a(f"""s_waitcnt vmcnt(0) lgkmcnt(0)
    s_barrier""")
    stamp(12)
    a(f'ds_read_b32 v{VM}, v67 offset:{L_MASKG}')
    a('s_waitcnt lgkmcnt(0)')
    def nextslot(dst, n, offs):
        a(f"""v_ffbl_b32 v2, v{VM}
        v_add_u32 v3, -1, v{VM}
        v_mad_u32_u24 v2, v2, s18, v68
        v_and_b32 v{VM}, v3, v{VM}""")
        for k, of in enumerate(offs):
            a(f'ds_read_b{32*n} {vr(dst+n*k,n)}, v2 offset:{of}')
    OF = (0, 16, 128, 144)
    nextslot(SUM, 4, OF); nextslot(TA, 4, OF); nextslot(TB, 4, OF)
    a(f'v_cmp_ne_u32 vcc, 0, v{VM}\ns_waitcnt lgkmcnt(4)')
    for k in range(16):
        a(f'v_add_f32 v{SUM+k}, v{SUM+k}, v{TA+k}')
    a('s_waitcnt lgkmcnt(0)')
    for k in range(16):
        a(f'v_add_f32 v{SUM+k}, v{SUM+k}, v{TB+k}')
    a(f's_cbranch_vccnz L_more\nL_more_back:\ns_cmp_lg_u32 s{S_SLOW}, 0\ns_cbranch_scc1 L_slow_n\nL_final_n:')
    for k in range(16):
        a(f'v_mul_f32 v{SUM+k}, s19, v{SUM+k}')
    for k in range(8):
        a(f'v_cvt_pk_bf16_f32 v{SUM+k}, v{SUM+2*k}, v{SUM+2*k+1}')
    a(f'v_cmp_gt_u32 vcc, s{S_NN}, v66\ns_nop 0')
    for s in range(2):
        for aa in range(2):
            a(mfma16(UH + aa * 4, WQ + aa * 8 + s * 4, SUM + s * 4, UH + aa * 4))
    a('s_nop 6')
    for k in range(4):
        a(f'v_cvt_pk_bf16_f32 v{88+k}, v{UH+2*k}, v{UH+2*k+1}')
    for k in range(4):
        a(f'v_lshlrev_b32 v{72+2*k}, 16, v{88+k}\nv_and_b32 v{73+2*k}, s4, v{88+k}')
    for k in range(8):
        a(f'v_mul_f32 v{80+k}, s5, v{72+k}')
    for k in range(8):
        a(f'v_exp_f32 v{80+k}, v{80+k}')
    for k in range(8):
        a(f'v_add_f32 v{80+k}, 1.0, v{80+k}')
    for k in range(8):
        a(f'v_rcp_f32 v{80+k}, v{80+k}')
    for k in range(8):
        a(f'v_mul_f32 v{80+k}, v{80+k}, v{72+k}')
    for k in range(4):
        a(f'v_cvt_pk_bf16_f32 v{88+k}, v{80+2*k}, v{81+2*k}')
    for k in range(4):
        a(f'v_lshlrev_b32 v{72+2*k}, 16, v{88+k}\nv_and_b32 v{73+2*k}, s4, v{88+k}')
    for k in range(8):
        a(f'v_add_f32 v{72+k}, v{72+k}, v{136+k}')
    for k in range(4):
        a(f'v_cvt_pk_bf16_f32 v{88+k}, v{72+2*k}, v{73+2*k}')
    a(f"""s_mov_b64 exec, vcc
    buffer_store_dwordx4 v[88:91], v69, {sr(S_OUT)}, s17 offen""")
    def endstamp():
        if o.stamps:
            a('s_mov_b64 exec, -1')
            stamp(13)
            a(f"""v_writelane_b32 v254, s{S_IT}, 14
            s_getreg_b32 s4, hwreg(HW_REG_XCC_ID)
            v_writelane_b32 v254, s4, 15
            s_lshl_b32 s4, s2, 3
            s_add_u32 s4, s4, s{S_WAVE}
            s_lshl_b32 s4, s4, 7
            s_add_u32 s4, s4, {WS_STAMP}
            s_mov_b64 exec, 0xffff
            buffer_store_dword v254, v{L4}, {sr(S_WS)}, s4 offen""")
    endstamp()
    a('L_done:\ns_endpgm')
    a(f"""L_posw:
    s_sub_u32 s16, s{S_WAVE}, 6
    s_lshl_b32 s16, s16, 6
    v_add_u32 v64, s16, v{V_LANE}
    v_mul_u32_u24 v66, 21846, v64
    v_lshrrev_b32 v66, 16, v66
    v_mul_u32_u24 v65, 3, v66
    v_sub_u32 v65, v64, v65
    v_lshlrev_b32 v69, 1, v64
    s_mul_i32 s17, s{S_N0}, 6
    v_lshlrev_b32 v70, 2, v66
    v_lshl_add_u32 v70, v65, 8, v70
    ds_read_b32 v70, v70 offset:{L_PD}
    v_lshrrev_b32 v67, 3, v66
    v_lshlrev_b32 v67, 2, v67
    v_and_b32 v68, 7, v66
    v_lshl_add_u32 v68, v68, 2, v65
    v_lshlrev_b32 v68, 3, v68
    v_add_u32 v68, {L_SLOT + 8*NSTR + 8}, v68
    s_movk_i32 s18, {SLOT}
    s_waitcnt vmcnt(0) lgkmcnt(0)
    s_barrier""")
    stamp(12)
    a(f"""ds_read_b32 v{VM}, v67 offset:{L_MASKG}
    v_mov_b32 v{SUM}, 0
    s_waitcnt lgkmcnt(0)
    L_posloop:""")
    for k in range(3):
        nextslot(TA + 2 * k, 2, (0,))
    a(f"""v_cmp_ne_u32 vcc, 0, v{VM}
    s_waitcnt lgkmcnt(0)
    v_add_f32 v{TA}, v{TA}, v{TA+1}
    v_add_f32 v{TA+2}, v{TA+2}, v{TA+3}
    v_add_f32 v{TA+4}, v{TA+4}, v{TA+5}
    v_add_f32 v{SUM}, v{SUM}, v{TA}
    v_add_f32 v{TA+2}, v{TA+2}, v{TA+4}
    v_add_f32 v{SUM}, v{SUM}, v{TA+2}
    s_cbranch_vccnz L_posloop
    s_cmp_lg_u32 s{S_SLOW}, 0
    s_cbranch_scc1 L_slow_p
    L_final_p:
    v_cvt_pk_bf16_f32 v{SUM}, v{SUM}, v{SUM}
    v_lshlrev_b32 v{SUM}, 16, v{SUM}
    s_mul_i32 s16, s{S_NN}, 3
    v_add_f32 v{SUM}, v{SUM}, v70
    v_cmp_gt_u32 vcc, s16, v64
    v_cvt_pk_bf16_f32 v{SUM}, v{SUM}, v{SUM}
    s_add_u32 s17, s17, {N*128}
    s_mov_b64 exec, vcc
    buffer_store_short v{SUM}, v69, {sr(S_OUT)}, s17 offen
    s_cmp_lg_u32 s{S_BUMP}, 0
    s_cbranch_scc1 L_latebump
    L_latebump_back:""")
    endstamp()
    a('s_endpgm')
    a(f"""L_miss:
    s_lshr_b64 s[6:7], s[4:5], 1
    s_or_b64 s[4:5], s[4:5], s[6:7]
    s_and_b32 s4, s4, 0x55555555
    s_and_b32 s5, s5, 0x55555555
    s_lshl_b64 s[6:7], s[4:5], 1
    s_or_b64 s[4:5], s[4:5], s[6:7]
    s_add_u32 s{S_IT}, s{S_IT}, 1
    s_cmp_ge_u32 s{S_IT}, {o.lim}
    s_cbranch_scc1 L_timeout
    s_sleep {o.sleep}
    s_mov_b64 exec, s[4:5]""")
    poll_loads()
    a(f"""s_mov_b64 exec, -1
    s_branch L_chk""")
    def markraw():
        return f"""v_lshrrev_b32 v{TT}, 1, v{V_LANE}
        v_lshlrev_b32 v{TT}, v{TT}, 1
        s_lshl_b32 s6, s{S_WAVE}, 2
        v_mov_b32 v{TT+1}, s6
        v_mov_b32 v{VH}, 0
        ds_or_b32 v{TT+1}, v{TT} offset:{L_RAWM}
        s_waitcnt lgkmcnt(0)"""
    a(f"""L_timeout:
    s_mov_b64 exec, s[4:5]
    {markraw()}
    s_mov_b64 exec, -1
    v_cmp_lt_u32 vcc, 96, v{VH}
    s_branch L_arr2""")
    a(f"""L_newgrp:""")
    a(groupof(S_T3, S_GN))
    a(xbload(S_GN))
    a('s_waitcnt lgkmcnt(0)\ns_branch L_newgrp_back')
    a('L_flush:')
    a(flush(S_GP))
    for k in range(32):
        a(f'v_mov_b32 v{ACC+k}, 0')
    a('s_branch L_flush_back')
    a(f"""L_extA:
    s_movk_i32 s4, 76""")
    for r in range(10, 15):
        k, m = divmod(r, 3)
        a(f's_movk_i32 s4, {24*k + 4*m}\nv_cmp_lt_i32 {M(r)}, s4, v{VHJ}')
    a(f's_cmp_eq_u32 s{S_RND}, 4\ns_cbranch_scc0 L_extA1')
    for r in range(9, 12):
        a(f's_mov_b64 {M(r)}, 0')
    a(f'L_extA1:\ns_cmp_eq_u32 s{S_RND}, 3\ns_cbranch_scc0 L_extA2')
    for r in range(12, 15):
        a(f's_mov_b64 {M(r)}, 0')
    a('L_extA2:')
    gather([3])
    a(f's_cmp_lg_u64 {M(12)}, 0\ns_cbranch_scc0 L_extA_back')
    gather([4])
    a('s_branch L_extA_back')
    a('L_extB:')
    for r in range(9, 12):
        a(f'ds_bpermute_b32 v{KEY+r}, v{KEY+r}, v177')
    place([9, 10, 11], True)
    a(f's_mov_b64 exec, -1\ns_cmp_lg_u64 {M(12)}, 0\ns_cbranch_scc0 L_extB_back')
    for r in range(12, 15):
        a(f'ds_bpermute_b32 v{KEY+r}, v{KEY+r}, v177')
    place([12, 13, 14], True)
    a('s_mov_b64 exec, -1\ns_branch L_extB_back')
    a(f"""L_store4:
    s_mov_b64 exec, vcc
    s_waitcnt lgkmcnt(0)
    buffer_store_dwordx4 {vr(RO+16,4)}, v12, {sr(S_WS)}, s9 offen{SC}
    s_branch L_store4_back""")
    a(f"""L_ext:
    v_cmp_lt_u32 vcc, 120, v{VH}
    s_cbranch_vccz L_ext1
    s_mov_b64 exec, vcc
    {markraw()}
    s_mov_b64 exec, -1
    L_ext1:
    v_cmp_lt_u32 vcc, 96, v{VH}
    s_cbranch_vccz L_hj
    s_mov_b64 exec, vcc
    s_movk_i32 s4, 4096
    s_mov_b32 s5, 0
    L_ext2:
    buffer_load_dwordx4 {vr(R+16,4)}, v{VRO}, {sr(S_WS)}, s4 offen{SC}
    s_waitcnt vmcnt(0)
    v_cmp_ne_u32 vcc, s{S_TAG}, v{R+19}
    s_cbranch_vccz L_ext3
    s_add_u32 s5, s5, 1
    s_cmp_lt_u32 s5, {o.lim}
    s_cbranch_scc1 L_ext2
    s_lshr_b64 s[6:7], vcc, 1
    s_or_b64 s[4:5], vcc, s[6:7]
    s_and_b32 s4, s4, 0x55555555
    s_and_b32 s5, s5, 0x55555555
    s_lshl_b64 s[6:7], s[4:5], 1
    s_or_b64 exec, s[4:5], s[6:7]
    {markraw()}
    L_ext3:
    s_mov_b64 exec, -1
    s_branch L_hj""")
    def bump():
        return f"""v_mov_b32 v{TMPA}, 0
        v_mov_b32 v{TMPB}, s{S_TAG}
        s_mov_b64 exec, 1
        buffer_store_dword v{TMPB}, v{TMPA}, {sr(S_WS)}, s{S_EOFF} offen{SC}
        s_mov_b64 exec, -1"""
    a(f"""L_bump:
    s_cmp_lg_u32 s{S_WAVE}, 7
    s_cbranch_scc1 L_bump_back
    s_cmp_lg_u32 s15, 0
    s_cselect_b32 s{S_BUMP}, 1, 0
    s_cbranch_scc1 L_bump_back
    {bump()}
    s_branch L_bump_back
    L_latebump:
    s_mov_b64 exec, -1
    s_mov_b32 s4, {CSTR}
    v_mul_u32_u24 v2, s4, v{V_LANE}
    s_mov_b32 s5, 0
    s_mov_b32 s6, {64*CSTR}
    s_mov_b32 s7, {128*CSTR}
    s_mov_b32 s8, {192*CSTR}
    L_lb1:
    buffer_load_dword v4, v2, {sr(S_WS)}, 0 offen offset:12{SC}
    buffer_load_dword v5, v2, {sr(S_WS)}, s6 offen offset:12{SC}
    buffer_load_dword v6, v2, {sr(S_WS)}, s7 offen offset:12{SC}
    buffer_load_dword v7, v2, {sr(S_WS)}, s8 offen offset:12{SC}
    s_waitcnt vmcnt(0)
    v_xor_b32 v4, s{S_TAG}, v4
    v_xor_b32 v5, s{S_TAG}, v5
    v_xor_b32 v6, s{S_TAG}, v6
    v_xor_b32 v7, s{S_TAG}, v7
    v_or3_b32 v4, v4, v5, v6
    v_or_b32 v4, v4, v7
    v_cmp_ne_u32 vcc, 0, v4
    s_cbranch_vccz L_lb2
    s_sleep 8
    s_add_u32 s5, s5, 1
    s_cmp_lt_u32 s5, 0x40000
    s_cbranch_scc1 L_lb1
    L_lb2:
    {bump()}
    s_branch L_latebump_back""")
    a('L_more:')
    nextslot(TA, 4, OF)
    a(f'v_cmp_ne_u32 vcc, 0, v{VM}\ns_waitcnt lgkmcnt(0)')
    for k in range(16):
        a(f'v_add_f32 v{SUM+k}, v{SUM+k}, v{TA+k}')
    a('s_cbranch_vccnz L_more\ns_branch L_more_back')
    a('L_gate:')
    for k in range(3):
        a(f's_cmp_eq_u32 s{S_RND}, {k}\ns_cbranch_scc1 L_gate{k}')
        for r in range(3*k, 3*k+3):
            a(f's_mov_b64 {M(r)}, 0')
        a(f'L_gate{k}:')
    a(f"""s_cmp_ge_u32 s{S_RND}, 3
    s_cbranch_scc1 L_gate_back
    s_mov_b64 {M(9)}, 0
    s_branch L_gate_back""")
    a(f"""L_goslow:
    s_mov_b32 s{S_SLOW}, 1
    s_mov_b32 s{S_RW}, -1
    s_mov_b32 s{S_RB}, 0
    s_mov_b32 s{S_RJ}, 4
    s_cmp_gt_u32 s14, {CAP*16}
    s_cbranch_scc0 L_goslow_back
    s_mov_b32 s{S_RND}, 0
    s_barrier
    s_branch L_round""")
    def advance(tag, final):
        a(f"""s_add_u32 s{S_RND}, s{S_RND}, 1
        s_cmp_lt_u32 s{S_RND}, 5
        s_cbranch_scc1 L_adv_go{tag}
        s_mov_b32 s{S_RND}, 8
        s_add_u32 s{S_RJ}, s{S_RJ}, 1
        s_cmp_lt_u32 s{S_RJ}, 5
        s_cbranch_scc1 L_adv_go{tag}
        ds_read_b32 v2, v{L4} offset:{L_RAWM}
        s_mov_b32 s{S_RJ}, 0
        s_sub_u32 s6, s{S_RB}, 1
        s_and_b32 s{S_RB}, s{S_RB}, s6
        s_waitcnt lgkmcnt(0)
        L_adv_w{tag}:
        s_cmp_lg_u32 s{S_RB}, 0
        s_cbranch_scc1 L_adv_go{tag}
        s_add_u32 s{S_RW}, s{S_RW}, 1
        s_cmp_ge_u32 s{S_RW}, 8
        s_cbranch_scc1 {final}
        v_readlane_b32 s{S_RB}, v2, s{S_RW}
        s_branch L_adv_w{tag}
        L_adv_go{tag}:""")
    a(f"""L_slow_n:
    s_lshl_b32 s16, s16, 12
    s_add_u32 s16, s16, {L_MAST}
    v_lshl_add_u32 v67, v{V_LANE}, 4, s16
    s_cmp_lt_u32 s{S_SLOW}, 2
    s_cbranch_scc1 L_slow_n1""")
    for k in range(4):
        a(f'ds_read_b128 {vr(TA+4*k,4)}, v67 offset:{1024*k}')
    a('s_waitcnt lgkmcnt(0)')
    for k in range(16):
        a(f'v_add_f32 v{SUM+k}, v{SUM+k}, v{TA+k}')
    a('L_slow_n1:')
    advance('n', 'L_final_n')
    a(f"""s_barrier
    s_bitcmp1_b32 s{S_WAVE}, 0
    s_cbranch_scc1 L_round0""")
    for k in range(4):
        a(f'ds_write_b128 v67, {vr(SUM+4*k,4)} offset:{1024*k}')
    a(f"""s_branch L_round0
    L_slow_p:
    v_lshlrev_b32 v67, 2, v64
    v_add_u32 v67, {L_MAST + 12288}, v67
    s_cmp_lt_u32 s{S_SLOW}, 2
    s_cbranch_scc1 L_slow_p1
    ds_read_b32 v{TA}, v67
    s_waitcnt lgkmcnt(0)
    v_add_f32 v{SUM}, v{SUM}, v{TA}
    L_slow_p1:""")
    advance('p', 'L_final_p')
    a(f"""s_barrier
    ds_write_b32 v67, v{SUM}
    L_round0:
    s_mov_b32 s{S_SLOW}, 3
    v_lshlrev_b32 v2, 4, v{V_LANE}
    s_lshl_b32 s{S_T2}, s{S_WAVE}, 10""")
    pos_dma(2)
    a(f"""L_round:
    v_mov_b32 v3, 0
    ds_write_b32 v{L4}, v3 offset:{L_CNT}
    s_mov_b64 exec, 0xff
    ds_write_b32 v{L4}, v3 offset:{L_MASKG}
    s_mov_b64 exec, -1
    v_mov_b32 v2, 16
    s_cmp_ge_u32 s{S_RND}, 8
    s_cbranch_scc1 L_rawround
    s_movk_i32 s4, 4096""")
    poll_loads()
    a(f"""buffer_load_dwordx4 {vr(R+16,4)}, v{VRO}, {sr(S_WS)}, s4 offen{SC}
    s_lshl_b32 s6, s{S_WAVE}, 2
    v_mov_b32 v{TT}, s6
    ds_read_b32 v{TT}, v{TT} offset:{L_RAWM}
    v_lshrrev_b32 v{TT+1}, 1, v{V_LANE}
    v_mov_b32 v3, s{S_KX}
    s_movk_i32 s19, 72
    s_waitcnt vmcnt(0) lgkmcnt(0)
    v_xor_b32_dpp v{VH}, v{R}, v3 quad_perm:[0,0,2,2] row_mask:0xf bank_mask:0xf
    v_lshrrev_b32 v{TT}, v{TT+1}, v{TT}
    v_and_b32 v{TT}, 1, v{TT}
    v_cmp_eq_u32 vcc, 0, v{TT}
    s_nop 1
    v_cndmask_b32 v{VH}, 0, v{VH}, vcc
    s_barrier
    s_branch L_hj
    L_rawround:""")
    for r in range(1, 9):
        a(f's_mov_b64 {M(r)}, 0')
    a(f"""s_mov_b32 s{S_EXT}, 0
    s_load_dwordx4 s[4:7], s[0:1], 24
    s_ff1_i32_b32 s{S_T1}, s{S_RB}
    s_lshl_b32 s{S_T2}, s{S_RW}, 5
    s_add_u32 s{S_T1}, s{S_T1}, s{S_T2}
    s_mul_i32 s{S_T2}, s{S_T1}, 2500
    v_mov_b32 v{VCB}, s{S_T2}
    s_lshl_b32 s{S_T2}, s{S_T2}, 2
    s_lshl_b32 s{S_T3}, s{S_RJ}, 9
    v_add_u32 v{TT+1}, s{S_T3}, v0
    v_lshlrev_b32 v3, 2, v{TT+1}
    s_waitcnt lgkmcnt(0)""")
    srd(a, 8, 4, E * 4)
    srd(a, 12, 6, E * 4)
    a(f"""buffer_load_dword v{TT+2}, v3, s[12:15], s{S_T2} offen
    buffer_load_dword v{R}, v3, s[8:11], s{S_T2} offen
    s_movk_i32 s4, 2500
    v_cmp_gt_u32 s[6:7], s4, v{TT+1}
    s_mov_b32 s5, {MAGIC625}
    s_waitcnt vmcnt(0)
    v_lshl_or_b32 v3, v{TT+2}, 4, 15
    v_mul_hi_u32 v3, v3, s5
    v_subrev_u32 v{TT+2}, s{S_N0}, v{TT+2}
    v_cmp_eq_u32 {M(0)}, s{S_BETA}, v3
    v_lshl_or_b32 v{R}, v{TT+1}, 14, v{R}
    v_lshl_or_b32 v{R}, v{TT+2}, 26, v{R}
    v_mov_b32 v3, 0xbf80
    s_and_b64 {M(0)}, {M(0)}, s[6:7]
    s_barrier
    s_branch L_count
    L_code_end:""")
    return a.text()

HEADER = open('gather_scatter__cheap_equivariant_egnn__graph.s.ref').read().split('; Override launch')[0]

def generate(o):
    t = gen(o)
    s = HEADER
    s += f'; @launch grid=(256,1,1) block=(512,1,1) lds={L_END}\n'
    s += '; Generated by gen/gen3.py (own generator). Phase 1: every workgroup bins 2500 edges by destination bin and\n'
    s += '; publishes them (16-byte granules that carry a per-launch tag); phase 2: every workgroup does the edge MLP,\n'
    s += '; the segment sums (one-hot MFMA) and the node update of its 39/40 nodes.\n'
    s += '.amdgcn_target "amdgcn-amd-amdhsa--gfx950"\n.text\n'
    s += f'.globl {KN}\n.p2align 8\n.type {KN},@function\n{KN}:\n{t}'
    s += f""".section .rodata,"a"
.p2align 6
.amdhsa_kernel {KN}
  .amdhsa_next_free_vgpr 256
  .amdhsa_next_free_sgpr 102
  .amdhsa_accum_offset 256
  .amdhsa_group_segment_fixed_size 0
  .amdhsa_kernarg_size 88
  .amdhsa_user_sgpr_count 2
  .amdhsa_user_sgpr_kernarg_segment_ptr 1
  .amdhsa_system_sgpr_workgroup_id_x 1
  .amdhsa_float_denorm_mode_32 3
.end_amdhsa_kernel
"""
    return s

if __name__ == '__main__':
    o = Opt()
    out = 'g3.s'
    for arg in sys.argv[1:]:
        if arg.startswith('out='):
            out = arg[4:]
        else:
            k, v = arg.split('=')
            setattr(o, k, v if k == 'x' else int(v))
    open(out, 'w').write(generate(o))
    print('wrote', out, 'LDS', L_END)
```
